```python
import torch

def _softmax(x, axis=-1):
    return torch.softmax(x, dim=axis)
def _gelu(x):
    return torch.nn.functional.gelu(x, approximate="tanh")
def _silu(x):
    return torch.nn.functional.silu(x)
def _sigmoid(x):
    return torch.sigmoid(x)
def _layernorm(x, axis=-1, eps=1e-5):
    m = x.mean(dim=axis, keepdim=True)
    v = x.var(dim=axis, keepdim=True, unbiased=False)
    return (x - m) / torch.sqrt(v + eps)
def _scatter_add(tgt, idx, src, axis=0):
    return tgt.clone().index_add_(axis, idx, src)
def _segment_sum(src, seg, n):
    out = torch.zeros((n,) + src.shape[1:], dtype=src.dtype)
    return out.index_add_(0, seg, src)
def _pad(x, pw):
    flat = tuple(v for pair in reversed(pw) for v in pair)
    return torch.nn.functional.pad(x, flat)

kernel_name = 'concat_heads__compressed_kv_cla__mha_block_cached__decode'

def setup_inputs():

    _w = (lambda a: (lambda t: t.to(torch.bfloat16) if t.is_floating_point() else t)(torch.as_tensor(a)))
    def _A_setup():
        B, H, Sq, Sk, D, M = 1, 32, 1, 8192, 128, 512
        Dc = 4 * D
        return {
            "x": _w((lambda *s: torch.randn(*s, dtype=torch.bfloat16) * 3.2)(B, Sq, M)),
            "c_kv": _w((lambda *s: torch.randn(*s, dtype=torch.bfloat16) * 0.1)(B, Sk, Dc)),
            "w_q": _w((lambda *s: torch.randn(*s, dtype=torch.bfloat16) * 6.4)(M, H, D) * (M ** -0.5)),
            "w_uk": _w((lambda *s: torch.randn(*s, dtype=torch.bfloat16) * 6.4)(Dc, H, D) * (Dc ** -0.5)),
            "w_uv": _w((lambda *s: torch.randn(*s, dtype=torch.bfloat16) * 0.1)(Dc, H, D) * (Dc ** -0.5)),
            "w_o": _w((lambda *s: torch.randn(*s, dtype=torch.bfloat16) * 0.1)(H, D, M) * ((H * D) ** -0.5)),
        }
    _A_in = _A_setup()

    def _B_setup():
        B, Sq, D = 1, 1, 512
        H, Sk, Dh = 32, 8192, 128
        return {
            "x": _w((lambda *s: torch.randn(*s, dtype=torch.bfloat16) * 1.6)(B, Sq, D)),
            "k_cache": _w((lambda *s: torch.randn(*s, dtype=torch.bfloat16) * 1.6)(B, H, Sk, Dh)),
            "v_cache": _w((lambda *s: torch.randn(*s, dtype=torch.bfloat16) * 0.05)(B, H, Sk, Dh)),
            "wq": _w((lambda *s: torch.randn(*s, dtype=torch.bfloat16) * 1.6)(D, H * Dh) * (D ** -0.5)),
            "wo": _w((lambda *s: torch.randn(*s, dtype=torch.bfloat16) * 0.05)(H * Dh, D) * ((H * Dh) ** -0.5)),
        }
    _B_in = _B_setup()

    return {
        "A_x": _A_in["x"],
        "A_c_kv": _A_in["c_kv"],
        "A_w_q": _A_in["w_q"],
        "A_w_uk": _A_in["w_uk"],
        "A_w_uv": _A_in["w_uv"],
        "A_w_o": _A_in["w_o"],
        "B_x": _B_in["x"],
        "B_k_cache": _B_in["k_cache"],
        "B_v_cache": _B_in["v_cache"],
        "B_wq": _B_in["wq"],
        "B_wo": _B_in["wo"],
    }

def reference(A_x, A_c_kv, A_w_q, A_w_uk, A_w_uv, A_w_o, B_x, B_k_cache, B_v_cache, B_wq, B_wo):
    def _A_ref(x, c_kv, w_q, w_uk, w_uv, w_o):
        B, Sq, M = x.shape[0], x.shape[1], x.shape[2]
        Sk = c_kv.shape[1]
        H, D = w_q.shape[1], w_q.shape[2]
        q = torch.einsum("bqm,mhd->bhqd", x, w_q)
        k = torch.einsum("bkc,chd->bhkd", c_kv, w_uk)
        v = torch.einsum("bkc,chd->bhkd", c_kv, w_uv)
        scores = torch.einsum("bhqd,bhkd->bhqk", q, k) * (D ** -0.5)
        off = Sk - Sq
        qi = torch.arange(Sq)[:, None]
        kj = torch.arange(Sk)[None, :]
        cmask = kj <= (qi + off)
        scores = torch.where(cmask[None, None], scores, -1e9)
        p = _softmax(scores, axis=-1)
        ctx = torch.einsum("bhqk,bhkd->bhqd", p, v)
        return torch.einsum("bhqd,hdm->bqm", ctx, w_o)

    def _B_ref(x, k_cache, v_cache, wq, wo):
        B, Sq, D = x.shape
        H, Dh = 32, 128
        q = (lambda x, *d: x.permute(*d))((x @ wq).reshape(B, Sq, H, Dh), 0, 2, 1, 3)
        scores = torch.einsum("bhqd,bhkd->bhqk", q, k_cache) * (Dh ** -0.5)
        p = _softmax(scores, axis=-1)
        o = torch.einsum("bhqk,bhkd->bhqd", p, v_cache)
        return (lambda x, *d: x.permute(*d))(o, 0, 2, 1, 3).reshape(B, Sq, H * Dh) @ wo

    a = _A_ref(A_x, A_c_kv, A_w_q, A_w_uk, A_w_uv, A_w_o)
    b = _B_ref(B_x, B_k_cache, B_v_cache, B_wq, B_wo)
    return torch.concatenate([a, b], axis=-1)
```

```python
import re

TRANS = ('v_exp_f32', 'v_log_f32', 'v_rcp_f32', 'v_rsq_f32', 'v_sqrt_f32', 'v_sin_f32', 'v_cos_f32')


def regs_of(op):
    op = op.strip()
    op = op.lstrip('-')
    if op.startswith('abs(') or op.startswith('|'):
        op = op.replace('abs(', '').replace(')', '').replace('|', '')
    m = re.fullmatch(r'([vsa])\[(\d+):(\d+)\]', op)
    if m:
        return {f'{m.group(1)}{i}' for i in range(int(m.group(2)), int(m.group(3)) + 1)}
    m = re.fullmatch(r'([vsa])(\d+)', op)
    if m:
        return {op}
    if op in ('vcc', 'vcc_lo', 'vcc_hi'):
        return {'vcc'}
    if op in ('exec', 'exec_lo', 'exec_hi'):
        return {'exec'}
    if op == 'm0':
        return {'m0'}
    return set()


class Ins:
    def __init__(self, text):
        self.text = text
        t = text.split(';')[0].strip()
        self.label = None
        self.kind = 'other'
        self.w = set()
        self.r = set()
        self.mn = ''
        self.states = 1
        self.target = None
        self.uncond = False
        if not t or t.startswith('.'):
            self.kind = 'none'
            self.states = 0
            return
        if t.endswith(':'):
            self.kind = 'label'
            self.label = t[:-1]
            self.states = 0
            return
        parts = t.split(None, 1)
        mn = parts[0]
        self.mn = mn
        rest = parts[1] if len(parts) > 1 else ''
        ops = []
        cur = ''
        depth = 0
        for ch in rest:
            if ch in '[(':
                depth += 1
            if ch in '])':
                depth -= 1
            if ch == ',' and depth == 0:
                ops.append(cur.strip())
                cur = ''
            else:
                cur += ch
        if cur.strip():
            ops.append(cur.strip())
        mods = ''
        if ops:
            last = ops[-1].split(None, 1)
            ops[-1] = last[0]
            mods = last[1] if len(last) > 1 else ''
        self.ops = ops
        self.mods = mods
        R = [regs_of(o) for o in ops]
        allr = lambda l: set().union(*l) if l else set()
        if mn == 's_nop':
            self.kind = 'nop'
            self.states = int(ops[0], 0) + 1
        elif mn.startswith('s_cbranch') or mn == 's_branch':
            self.kind = 'branch'
            self.target = ops[0]
            self.uncond = mn == 's_branch'
        elif mn == 's_endpgm':
            self.kind = 'branch'
            self.uncond = True
        elif mn.startswith('v_mfma'):
            self.kind = 'mfma'
            self.w = R[0]
            self.a = R[1] | R[2]
            self.c = R[3]
            self.r = self.a | self.c
            self.passes = 8 if '32x32' in mn else 4
        elif mn.startswith('v_'):
            self.kind = 'valu'
            self.dpp = '_dpp' in mn
            self.perm = mn.startswith('v_permlane')
            self.rdlane = mn.startswith('v_readfirstlane') or mn.startswith('v_readlane')
            self.trans = any(mn.startswith(x) for x in TRANS)
            self.w = R[0]
            self.r = allr(R[1:])
            if self.perm:
                self.w = R[0] | R[1]
                self.r = R[0] | R[1]
            if mn.startswith('v_fmac') or mn.startswith('v_dot2c') or self.dpp or mn.startswith('v_writelane'):
                self.r |= R[0]
            assert '_co_' not in mn
        elif mn.startswith('buffer_') or mn.startswith('global_'):
            self.kind = 'vmem'
            self.lds = ' lds' in (' ' + mods) or '_lds_' in mn
            self.wide = False
            if 'load' in mn and not self.lds:
                self.w = R[0]
                self.r = allr(R[1:])
            elif 'atomic' in mn and 'sc0' in mods and mn.startswith('global_'):
                self.w = R[0]
                self.r = allr(R[1:])
            else:
                self.r = allr(R)
                if 'store' in mn and ('x4' in mn or 'x3' in mn):
                    self.wide = True
                    self.data = R[0] if mn.startswith('buffer_') else R[1]
        elif mn.startswith('ds_'):
            self.kind = 'ds'
            if 'read' in mn or '_rtn' in mn or 'permute' in mn or 'swizzle' in mn:
                self.w = R[0]
                self.r = allr(R[1:])
            else:
                self.r = allr(R)
        elif mn.startswith('s_'):
            self.kind = 'salu'
            if ops and not mn.startswith('s_cmp') and not mn.startswith('s_waitcnt'):
                self.w = R[0]
                self.r = allr(R[1:])
            else:
                self.r = allr(R)


def isv(x):
    return x[0] == 'v' and x != 'vcc'


def need(p, c):
    n = 0
    if p.kind == 'valu':
        vw = {x for x in p.w if isv(x)}
        sw = {x for x in p.w if not isv(x)}
        if c.kind == 'mfma' and vw & c.r:
            n = max(n, 2)
        if c.kind == 'valu':
            if (c.dpp or c.perm) and vw & c.r:
                n = max(n, 2)
            if c.rdlane and vw & c.r:
                n = max(n, 1)
            if sw & c.r:
                n = max(n, 4 if (c.rdlane or c.mn.startswith('v_writelane')) else 2)
        if p.trans and c.kind in ('valu', 'vmem', 'ds') and vw & c.r:
            n = max(n, 1)
        if c.kind == 'vmem' and sw & c.r:
            n = max(n, 5)
        if c.kind == 'salu' and sw & c.r:
            n = max(n, 1)
    if p.kind == 'mfma':
        big = 12 if p.passes == 8 else 8
        if c.kind == 'valu' and p.w & (c.r | c.w):
            n = max(n, big)
        if c.kind in ('vmem', 'ds') and p.w & (c.r | c.w):
            n = max(n, big)
        if c.kind == 'mfma':
            if p.w & c.a:
                n = max(n, big)
            if p.w & c.c and not (p.w == c.c and p.mn == c.mn):
                n = max(n, big - 2)
            if p.w & c.w and not (p.w == c.c and p.mn == c.mn):
                n = max(n, big - 2)
        if c.kind == 'valu' and p.c & c.w:
            n = max(n, 7 if p.passes == 8 else 3)
    if p.kind == 'salu' and 'm0' in p.w and c.kind == 'vmem' and c.lds:
        n = max(n, 1)
    if p.kind == 'vmem' and p.wide:
        if c.kind in ('valu', 'mfma') and p.data & c.w:
            n = max(n, 2)
        elif p.data & c.w:
            n = max(n, 1)
    return n


def fix_hazards(lines):
    ins = [Ins(l) for l in lines]
    MAXD = 12
    changed = True
    start = 0
    anych = True
    while changed or anych:
        if not changed:
            start = 0
            anych = False
        changed = False
        labels = {x.label: i for i, x in enumerate(ins) if x.kind == 'label'}
        br = {}
        for i, x in enumerate(ins):
            if x.kind == 'branch' and x.target:
                br.setdefault(labels[x.target], []).append(i)
        for i in range(start, len(ins)):
            c = ins[i]
            if c.kind in ('none', 'label', 'nop', 'branch', 'other'):
                continue
            worst = 0
            stack = [(i - 1, 0, True)]
            seen = set()
            while stack:
                j, d, fall = stack.pop()
                if j < 0 or d >= MAXD or (j, d, fall) in seen:
                    continue
                seen.add((j, d, fall))
                p = ins[j]
                if fall and p.kind == 'branch' and p.uncond:
                    continue
                if p.kind == 'label':
                    for b in br.get(j, []):
                        stack.append((b, d, False))
                    stack.append((j - 1, d, True))
                    continue
                k = need(p, c)
                if k - d > worst:
                    worst = k - d
                stack.append((j - 1, d + p.states, True))
            if worst > 0:
                ins.insert(i, Ins(f's_nop {worst - 1}'))
                changed = True
                anych = True
                start = i
                break
    return [x.text for x in ins]
```

```python
import sys, struct, math
from asmlib import fix_hazards

NAME = 'concat_heads__compressed_kv_cla__mha_block_cached__decode'

HB = 0x6100
O_QPB, O_QPA, O_QABS, O_MLA, O_MLB, O_TICK, O_CP, O_OP, O_YA, O_YB, HBSZ = (
    0x0000, 0x1000, 0x2000, 0x2400, 0x2600, 0x2700, 0x2800, 0x3000, 0x5000, 0x5800, 0x6000)
CTXP = 0x100000
HS = 0x10100
WSA_SZ = 0x400000
OOB = 0x40000000
STAMP_OFF = 200 * 1024 * 1024
L_STG = 0x20000
L_SCR0 = 0x24000
L_SCR2 = 0x25000
L_MISC = 0x26000
F_Q, F_GO, F_BDONE, F_SYNC, F_LAST = 0, 4, 8, 12, 16
M_QB, M_QA, M_MX, M_LS, M_CT = 0x100, 0x200, 0x400, 0x600, 0x800
LDS_SZ = 0x26A00
SPIN_LIMIT = 400000
CSC = struct.unpack('<I', struct.pack('<f', (128 ** -0.5) * math.log2(math.e)))[0]
DPPM = 'row_mask:0xf bank_mask:0xf'


def gen(stamps=False, NT='nt', rot=16):
    o = []
    a = o.append
    uid = [0]

    def lab(p):
        uid[0] += 1
        return f'L_{p}_{uid[0]}'

    def vr(b, n=4):
        return f'v[{b}:{b + n - 1}]'

    def stamp(k):
        if stamps:
            a(f's_memrealtime s[{88 + 2 * k}:{89 + 2 * k}]')
            a('s_waitcnt lgkmcnt(0)')

    def endwave():
        if stamps:
            a('s_branch L_STAMPOUT')
        else:
            a('s_endpgm')

    def spin_again(label):
        a('s_add_u32 s52, s52, 1')
        a(f's_cmp_lt_u32 s52, {SPIN_LIMIT}')
        a(f's_cbranch_scc1 {label}')

    def srd(d, lo, size):
        a(f's_mov_b32 s{d}, s{lo}')
        a(f's_mov_b32 s{d + 1}, s{lo + 1}')
        a(f's_mov_b32 s{d + 2}, {size:#x}')
        a(f's_mov_b32 s{d + 3}, 0x20000')

    def ws_srds():
        a(f's_mul_i32 s6, s4, {HB:#x}')
        a('s_add_u32 s44, s42, s6')
        a('s_addc_u32 s45, s43, 0')
        a(f's_mov_b32 s46, {HBSZ:#x}')
        a('s_mov_b32 s47, 0x20000')
        srd(48, 42, WSA_SZ)

    def masks(t0, t1):
        a(f'v_and_b32 v{t0}, 1, v3')
        a(f'v_lshlrev_b32 v{t0}, 4, v{t0}')
        a(f'v_mov_b32 v{t1}, 0xffff')
        a(f'v_lshlrev_b32 v{t0}, v{t0}, v{t1}')
        a(f'v_bfe_u32 v{t1}, v3, 1, 2')
        for i in range(4):
            a(f'v_cmp_eq_u32 vcc, {i}, v{t1}')
            a(f'v_cndmask_b32 v{4 + i}, 0, v{t0}, vcc')

    def lds_wait(off, val, tmp, sleep=1):
        L = lab('lw')
        D = lab('lwd')
        a(f'{L}:')
        a(f'ds_read_b32 v{tmp}, v1 offset:{off}')
        a('s_waitcnt lgkmcnt(0)')
        a(f'v_readfirstlane_b32 s6, v{tmp}')
        a(f's_cmp_ge_u32 s6, {val}')
        a(f's_cbranch_scc1 {D}')
        if sleep:
            a(f's_sleep {sleep}')
        spin_again(L)
        a(f'{D}:')

    def lds_inc(off, tmp):
        a(f'v_mov_b32 v{tmp}, 1')
        a('s_mov_b64 exec, 1')
        a(f'ds_add_u32 v1, v{tmp} offset:{off}')
        a('s_mov_b64 exec, -1')

    def flag_wait(val):
        L = lab('fw')
        D = lab('fwd')
        a('s_lshl_b32 s7, s4, 2')
        a(f'{L}:')
        a('s_load_dword s6, s[40:41], s7 glc')
        a('s_waitcnt lgkmcnt(0)')
        a(f's_cmp_ge_u32 s6, {val}')
        a(f's_cbranch_scc1 {D}')
        a('s_sleep 2')
        spin_again(L)
        a(f'{D}:')

    def root_all():
        L = lab('ra')
        D = lab('rad')
        a(f'{L}:')
        a('s_load_dwordx16 s[56:71], s[40:41], 0 glc')
        a('s_load_dwordx16 s[72:87], s[40:41], 64 glc')
        a('s_waitcnt lgkmcnt(0)')
        for i in range(1, 16):
            a(f's_and_b64 s[56:57], s[56:57], s[{56 + 2 * i}:{57 + 2 * i}]')
        a('s_and_b32 s56, s56, s57')
        a('s_cmp_eq_u32 s56, 2')
        a(f's_cbranch_scc1 {D}')
        a('s_sleep 4')
        spin_again(L)
        a(f'{D}:')

    def umax(dst, regs):
        regs = list(regs)
        a(f'v_max_u32 v{dst}, v{regs[0]}, v{regs[1]}')
        i = 2
        while i + 1 < len(regs):
            a(f'v_max3_u32 v{dst}, v{regs[i]}, v{regs[i + 1]}, v{dst}')
            i += 2
        if i < len(regs):
            a(f'v_max_u32 v{dst}, v{regs[i]}, v{dst}')

    def poll(loads, regs, tmp, sleep=0):
        L = lab('pl')
        D = lab('pld')
        a(f'{L}:')
        for l in loads:
            a(l)
        a('s_waitcnt vmcnt(0)')
        umax(tmp, regs)
        a(f'v_cmp_eq_u32 vcc, -1, v{tmp}')
        a('s_and_b64 vcc, vcc, exec')
        a(f's_cbranch_scc0 {D}')
        a('s_mov_b64 exec, vcc')
        if sleep:
            a(f's_sleep {sleep}')
        spin_again(L)
        a(f'{D}:')
        a('s_mov_b64 exec, -1')

    def guard(r):
        a(f'v_min_u32 v{r}, -2, v{r}')

    def xrow(op, v, t):
        a(f'v_mov_b32 v{t}, v{v}')
        a(f'v_permlane16_swap_b32 v{v}, v{t}')
        a(f'{op} v{v}, v{v}, v{t}')
        a(f'v_mov_b32 v{t}, v{v}')
        a(f'v_permlane32_swap_b32 v{v}, v{t}')
        a(f'{op} v{v}, v{v}, v{t}')

    def inrow(op, v, rors):
        for k in rors:
            a(f'{op}_dpp v{v}, v{v}, v{v} row_ror:{k} {DPPM}')

    def rows_transpose_sum(v0, v1, v2, v3):
        a(f'v_permlane16_swap_b32 v{v0}, v{v1}')
        a(f'v_permlane16_swap_b32 v{v2}, v{v3}')
        a(f'v_add_f32 v{v0}, v{v0}, v{v1}')
        a(f'v_add_f32 v{v2}, v{v2}, v{v3}')
        a(f'v_permlane32_swap_b32 v{v0}, v{v2}')
        a(f'v_add_f32 v{v0}, v{v0}, v{v2}')

    def quad_sum(dst, S):
        a(f'v_mov_b32_dpp v{dst}, v{S} quad_perm:[0,0,0,0] {DPPM}')
        for i in range(1, 4):
            a(f'v_add_f32_dpp v{dst}, v{S + i}, v{dst} quad_perm:[{i},{i},{i},{i}] {DPPM}')

    def build_qb(QB, moff, t0, t4):
        a(f'v_and_b32 v{t0}, 3, v0')
        a(f'v_lshl_add_u32 v{t0}, v2, 2, v{t0}')
        a(f'v_lshl_add_u32 v{t0}, v{t0}, 4, v1')
        a(f'ds_read_b128 {vr(t4)}, v{t0} offset:{moff}')
        a(f'v_lshrrev_b32 v{t0}, 2, v3')
        a('s_waitcnt lgkmcnt(0)')
        for t in range(4):
            a(f'v_cmp_eq_u32 vcc, {t}, v{t0}')
            for i in range(4):
                a(f'v_cndmask_b32 v{QB + 4 * t + i}, 0, v{t4 + i}, vcc')

    def w_transpose(W, scr, t0, t1, t2):
        a(f'v_lshlrev_b32 v{t0}, 4, v0')
        a(f'v_add_u32 v{t0}, {scr:#x}, v{t0}')
        a(f'v_bfe_u32 v{t1}, v0, 2, 2')
        a(f'v_lshlrev_b32 v{t1}, 10, v{t1}')
        a(f'v_lshl_add_u32 v{t1}, v2, 8, v{t1}')
        a(f'v_and_b32 v{t2}, 3, v0')
        a(f'v_lshl_add_u32 v{t1}, v{t2}, 3, v{t1}')
        a(f'v_add_u32 v{t1}, {scr:#x}, v{t1}')
        for ks in range(4):
            for i in range(4):
                a(f'ds_write_b128 v{t0}, {vr(W + 16 * ks + 4 * i)} offset:{i * 1024}')
            a('s_waitcnt lgkmcnt(0)')
            for nt in range(4):
                for sec in range(2):
                    a(f'ds_read_b64_tr_b16 {vr(W + 16 * ks + 4 * nt + 2 * sec, 2)}, v{t1} offset:{sec * 128 + nt * 32}')
            a('s_waitcnt lgkmcnt(0)')

    def final_reduce(yoff, outoff, G, t):
        a(f'v_lshrrev_b32 v{t}, 2, v0')
        a(f'v_mul_u32_u24 v{t}, {HB:#x}, v{t}')
        a(f'v_and_b32 v{t + 1}, 3, v0')
        a(f'v_lshl_add_u32 v{t}, v{t + 1}, 4, v{t}')
        a('s_lshl_b32 s6, s4, 6')
        a(f's_add_u32 s54, s6, {yoff:#x}')
        a(f's_add_u32 s55, s54, {16 * HB:#x}')
        a(f'v_lshl_add_u32 v{t + 1}, v{t + 1}, 2, v2')
        a(f'v_lshlrev_b32 v{t + 1}, 1, v{t + 1}')
        a('s_lshl_b32 s6, s4, 5')
        a(f's_add_u32 s6, s6, {outoff}')
        a(f'v_add_u32 v{t + 1}, s6, v{t + 1}')
        a(f'v_mov_b32 v{t + 2}, {OOB:#x}')
        a('v_cmp_gt_u32 vcc, 4, v3')
        a(f'v_cndmask_b32 v{t + 1}, v{t + 2}, v{t + 1}, vcc')
        srd(8, 38, 2048)
        return lambda: final_reduce2(G, t)

    def final_reduce2(G, t):
        poll([f'buffer_load_dwordx4 {vr(G)}, v{t}, s[48:51], s54 offen sc1',
              f'buffer_load_dwordx4 {vr(G + 4)}, v{t}, s[48:51], s55 offen sc1'], range(G, G + 8), t + 2)
        for i in range(4):
            a(f'v_add_f32 v{G + i}, v{G + i}, v{G + 4 + i}')
        for k in (4, 8):
            for i in range(4):
                a(f'v_add_f32_dpp v{G + i}, v{G + i}, v{G + i} row_ror:{k} {DPPM}')
        rows_transpose_sum(G, G + 1, G + 2, G + 3)
        a(f'v_cvt_pk_bf16_f32 v{G}, v{G}, v{G}')
        a(f'buffer_store_short v{G}, v{t + 1}, s[8:11], 0 offen')

    a('; @launch grid=(256,1,1) block=(448,1,1) lds=%d' % LDS_SZ)
    a('.amdgcn_target "amdgcn-amd-amdhsa--gfx950"')
    a('.text')
    a(f'.globl {NAME}_kernel')
    a('.p2align 8')
    a(f'.type {NAME}_kernel,@function')
    a(f'{NAME}_kernel:')
    a('s_cmp_ge_u32 s2, 256')
    a('s_cbranch_scc1 L_END')
    if stamps:
        a('s_memrealtime s[88:89]')
        for k in range(90, 100):
            a(f's_mov_b32 s{k}, 0')
    a('s_load_dwordx16 s[16:31], s[0:1], 0')
    a('s_load_dwordx8 s[32:39], s[0:1], 64')
    a('s_load_dwordx4 s[40:43], s[0:1], 96')
    a('v_lshrrev_b32 v1, 6, v0')
    a('v_and_b32 v0, 63, v0')
    a('v_readfirstlane_b32 s3, v1')
    a('s_lshr_b32 s4, s2, 3')
    a('s_and_b32 s5, s2, 7')
    a(f'v_mov_b32 v1, {L_MISC:#x}')
    a('v_lshl_add_u32 v5, v0, 2, v1')
    a('v_mov_b32 v4, 0')
    a('ds_write_b32 v5, v4')
    a('v_lshrrev_b32 v2, 4, v0')
    a('v_and_b32 v3, 15, v0')
    a('s_mov_b32 s52, 0')
    a('s_sub_u32 s53, s5, s4')
    a('s_and_b32 s53, s53, 7')
    a('s_cmp_ge_u32 s3, 3')
    a('s_cbranch_scc1 L_BW')
    a('s_cmp_eq_u32 s3, 2')
    a('s_cbranch_scc1 L_W2')

    W1, ACC, BT, W2R, G = 16, 80, 84, 96, 160
    a('s_lshl_b32 s6, s5, 19')
    a('s_lshl_b32 s7, s4, 8')
    a('s_add_u32 s54, s6, s7')
    a('v_lshlrev_b32 v8, 13, v2')
    a('v_lshl_add_u32 v8, v3, 4, v8')
    a('v_add_u32 v8, s54, v8')
    a('s_lshl_b32 s55, s5, 7')
    a('v_lshlrev_b32 v9, 1, v2')
    a('v_lshl_add_u32 v9, v3, 3, v9')
    a('v_add_u32 v9, s55, v9')
    a('s_mov_b32 s10, 0x400000')
    a('s_mov_b32 s11, 0x20000')
    a('s_mov_b32 s14, 0x400000')
    a('s_mov_b32 s15, 0x20000')
    a('s_mov_b32 s56, 0')
    a('s_cmp_eq_u32 s3, 0')
    a('s_waitcnt lgkmcnt(0)')
    a('s_cselect_b64 s[8:9], s[34:35], s[20:21]')
    a('s_cselect_b64 s[6:7], s[28:29], s[16:17]')
    a('s_cselect_b64 s[12:13], s[36:37], s[22:23]')
    a('s_barrier')
    a('global_load_ushort v9, v9, s[6:7]')
    for u in range(16):
        a(f'buffer_load_dwordx4 {vr(W1 + 4 * u)}, v8, s[8:11], s56 offen {NT}')
        if u < 15:
            a('s_add_u32 s56, s56, 0x8000')
    ws_srds()
    masks(10, 11)
    a('s_cmp_eq_u32 s3, 0')
    a('s_cbranch_scc1 L_P1_o0')
    a('v_lshrrev_b32 v10, 2, v3')
    a('v_lshlrev_b32 v10, 17, v10')
    a('v_lshl_add_u32 v10, v2, 6, v10')
    a('v_and_b32 v11, 3, v0')
    a('v_lshl_add_u32 v10, v11, 4, v10')
    a('v_add_u32 v10, s54, v10')
    a('s_branch L_P1_o1')
    a('L_P1_o0:')
    a('v_lshrrev_b32 v10, 3, v0')
    a('v_lshlrev_b32 v10, 10, v10')
    a('v_and_b32 v11, 7, v0')
    a('v_lshl_add_u32 v10, v11, 4, v10')
    a('s_lshl_b32 s6, s4, 17')
    a('s_add_u32 s6, s6, s55')
    a('v_add_u32 v10, s6, v10')
    a('L_P1_o1:')
    a('s_lshl_b32 s57, s3, 12')
    a('s_lshl_b32 s6, s5, 9')
    a('s_add_u32 s6, s6, s57')
    a('v_lshl_add_u32 v12, v2, 3, v3')
    a('v_lshlrev_b32 v12, 4, v12')
    a('v_add_u32 v12, s6, v12')
    a(f'v_mov_b32 v11, {OOB:#x}')
    a('v_cmp_gt_u32 vcc, 8, v3')
    a('v_cndmask_b32 v12, v11, v12, vcc')
    a('v_lshlrev_b32 v13, 4, v0')
    a('s_mov_b32 s56, 0')
    a('s_waitcnt vmcnt(16)')
    a('v_lshl_or_b32 v9, v9, 16, v9')
    for u in range(16):
        B = BT + 4 * (u & 1)
        for i in range(4):
            a(f'v_and_b32_dpp v{B + i}, v9, v{4 + i} row_newbcast:{u} {DPPM}')
        a('s_waitcnt vmcnt(15)')
        a(f'v_mfma_f32_16x16x32_bf16 {vr(ACC)}, {vr(W1 + 4 * u)}, {vr(B)}, {vr(ACC) if u else "0"}')
        a(f'buffer_load_dwordx4 {vr(W2R + 4 * u)}, v10, s[12:15], s56 offen {NT}')
        if u < 15:
            a('s_add_u32 s56, s56, 0x2000')
    stamp(1)
    a('s_and_b32 s6, s53, 3')
    a('s_cbranch_scc0 L_P1_nogo')
    lds_inc(F_GO, 11)
    a('L_P1_nogo:')
    flag_wait(1)
    for i in range(4):
        guard(ACC + i)
    a(f'buffer_store_dwordx4 {vr(ACC)}, v12, s[44:47], 0 offen sc1')
    stamp(2)
    poll([f'buffer_load_dwordx4 {vr(G + 4 * i)}, v13, s[44:47], s57 offen offset:{i * 1024} sc1' for i in range(4)],
         range(G, G + 16), 11)
    for i in range(4):
        a(f'v_add_f32 v{G + i}, v{G + i}, v{G + 4 + i}')
        a(f'v_add_f32 v{G + 8 + i}, v{G + 8 + i}, v{G + 12 + i}')
    for i in range(4):
        a(f'v_add_f32 v{G + i}, v{G + i}, v{G + 8 + i}')
        a(f'v_mov_b32 v{G + 4 + i}, v{G + i}')
    for i in range(4):
        a(f'v_permlane32_swap_b32 v{G + i}, v{G + 4 + i}')
    for i in range(4):
        a(f'v_add_f32 v{G + i}, v{G + i}, v{G + 4 + i}')
    a(f'v_cvt_pk_bf16_f32 v{G}, v{G}, v{G + 1}')
    a(f'v_cvt_pk_bf16_f32 v{G + 2}, v{G + 2}, v{G + 3}')
    a('v_bfe_u32 v11, v0, 3, 2')
    a('v_lshl_add_u32 v11, v11, 6, v1')
    a('v_and_b32 v14, 7, v0')
    a('v_lshl_add_u32 v11, v14, 1, v11')
    a('s_lshl_b32 s6, s3, 8')
    a('v_add_u32 v11, s6, v11')
    a(f'ds_write_b16 v11, v{G} offset:{M_QB}')
    a(f'ds_write_b16_d16_hi v11, v{G} offset:{M_QB + 16}')
    a(f'ds_write_b16 v11, v{G + 2} offset:{M_QB + 32}')
    a(f'ds_write_b16_d16_hi v11, v{G + 2} offset:{M_QB + 48}')
    flag_wait(2)
    stamp(3)
    a('s_cmp_eq_u32 s3, 0')
    a('s_cbranch_scc0 L_W1')

    lds_inc(F_Q, 11)
    w_transpose(W2R, L_SCR0, 11, 14, 15)
    GO, GM, DD, WG = 16, 48, 160, 64
    a('v_lshlrev_b32 v12, 8, v3')
    a('v_lshl_add_u32 v12, v2, 4, v12')
    a(f'v_add_u32 v12, {O_OP:#x}, v12')
    a('v_lshlrev_b32 v13, 5, v2')
    a(f'v_add_u32 v13, {O_MLB:#x}, v13')
    a('s_lshl_b32 s6, s5, 8')
    a(f's_add_u32 s6, s6, {O_YB:#x}')
    a('v_lshlrev_b32 v14, 2, v0')
    a('v_add_u32 v14, s6, v14')
    a('s_movk_i32 s56, 0x1000')
    lds_wait(F_BDONE, 4, 11, sleep=2)
    stamp(4)
    lo = []
    for pg in range(2):
        for hf in range(2):
            lo.append(f'buffer_load_dwordx4 {vr(GM + 8 * pg + 4 * hf)}, v13, s[44:47], 0 offen offset:{pg * 128 + hf * 16} sc1')
    for pg in range(2):
        for ks in range(4):
            lo.append(f'buffer_load_dwordx4 {vr(GO + 16 * pg + 4 * ks)}, v12, s[44:47], {"s56" if pg else "0"} offen offset:{ks * 64} sc1')
    poll(lo, range(GO, GO + 48), 11)
    mf = []
    for ks in range(4):
        for pg in range(2):
            for nt in range(4):
                D = DD + 16 * pg + 4 * nt
                mf.append(f'v_mfma_f32_16x16x32_bf16 {vr(D)}, {vr(GO + 16 * pg + 4 * ks)}, {vr(W2R + 16 * ks + 4 * nt)}, {vr(D) if ks else "0"}')
    sv = o
    o = []
    a = o.append
    a(f'v_max3_f32 v8, v{GM}, v{GM + 2}, v{GM + 4}')
    a(f'v_max3_f32 v8, v{GM + 6}, v{GM + 8}, v8')
    a(f'v_max3_f32 v8, v{GM + 10}, v{GM + 12}, v8')
    a(f'v_max_f32 v8, v{GM + 14}, v8')
    xrow('v_max_f32', 8, 9)
    for i in range(8):
        a(f'v_sub_f32 v{WG + i}, v{GM + 2 * i}, v8')
    for i in range(8):
        a(f'v_exp_f32 v{WG + i}, v{WG + i}')
    a(f'v_mul_f32 v8, v{WG}, v{GM + 1}')
    for i in range(1, 8):
        a(f'v_fmac_f32 v8, v{WG + i}, v{GM + 2 * i + 1}')
    xrow('v_add_f32', 8, 9)
    a('v_rcp_f32 v8, v8')
    val = o
    o = sv
    a = o.append
    while mf or val:
        if mf:
            a(mf.pop(0))
        for _ in range(2):
            if val:
                a(val.pop(0))
    for nt in range(4):
        a(f'v_mul_f32 v{72 + nt}, v{WG}, v{DD + 4 * nt}')
    for k in range(1, 8):
        for nt in range(4):
            a(f'v_fmac_f32 v{72 + nt}, v{WG + k}, v{DD + 16 * (k >> 2) + 4 * nt + (k & 3)}')
    rows_transpose_sum(72, 73, 74, 75)
    a('v_mul_f32 v72, v72, v8')
    guard(72)
    a('buffer_store_dword v72, v14, s[44:47], 0 offen sc1')
    stamp(5)
    endwave()

    a('L_W1:')
    QB, S = 176, 192
    build_qb(QB, M_QA, 11, 16)
    for t in range(4):
        for j in range(4):
            a(f'v_mfma_f32_16x16x32_bf16 {vr(S + 4 * j)}, {vr(W2R + 4 * (4 * t + j))}, {vr(QB + 4 * t)}, {vr(S + 4 * j) if t else "0"}')
    a('v_lshrrev_b32 v12, 2, v0')
    a('v_lshlrev_b32 v12, 3, v12')
    a(f's_add_u32 s6, s55, {O_QABS:#x}')
    a('v_add_u32 v12, s6, v12')
    a('v_and_b32 v11, 3, v0')
    a('v_cmp_eq_u32 vcc, 0, v11')
    a(f'v_mov_b32 v11, {OOB:#x}')
    a('v_cndmask_b32 v12, v11, v12, vcc')
    for j in range(4):
        quad_sum(16 + j, S + 4 * j)
    a('v_cvt_pk_bf16_f32 v16, v16, v17')
    a('v_cvt_pk_bf16_f32 v17, v18, v19')
    guard(16)
    guard(17)
    a('buffer_store_dwordx2 v[16:17], v12, s[44:47], 0 offen sc1')
    stamp(4)
    a('s_cmp_eq_u32 s53, 2')
    a('s_cbranch_scc0 L_FIN')
    root_all()
    fr = final_reduce(O_YB, 1024, 24, 20)
    lds_wait(F_BDONE, 4, 11, sleep=2)
    fr()
    stamp(5)
    a('L_FIN:')
    endwave()

    a('L_W2:')
    WV, WO, G, ACC, BT = 16, 80, 144, 176, 180
    a('v_lshlrev_b32 v13, 4, v0')
    for i in range(4):
        a(f'v_mov_b32 v{16 + i}, -1')
    a('s_waitcnt lgkmcnt(0)')
    ws_srds()
    a('s_barrier')
    a('s_cmp_eq_u32 s5, 0')
    a('s_cbranch_scc0 L_W2_nr')
    a('s_lshl_b32 s6, s4, 2')
    a('v_mov_b32 v20, s6')
    a('v_mov_b32 v21, 1')
    a('v_mov_b32 v22, 2')
    for k in range(24):
        if k % 4 == 0:
            a(f's_movk_i32 s56, {k * 1024:#x}')
        a(f'buffer_store_dwordx4 v[16:19], v13, s[44:47], s56 offen offset:{(k % 4) * 1024} sc1')
        if k == 7 or k == 23:
            a('s_waitcnt vmcnt(0)')
            a('s_mov_b64 exec, 1')
            a(f'global_store_dword v20, v{21 if k == 7 else 22}, s[40:41] sc1')
            a('s_mov_b64 exec, -1')
    a('L_W2_nr:')
    stamp(1)
    srd(8, 24, 0x400000)
    srd(12, 26, 0x400000)
    masks(10, 11)
    a('s_lshr_b32 s6, s5, 1')
    a('s_lshl_b32 s6, s6, 20')
    a('s_and_b32 s7, s5, 1')
    a('s_lshl_b32 s7, s7, 17')
    a('s_add_u32 s6, s6, s7')
    a('s_lshl_b32 s7, s4, 8')
    a('s_add_u32 s6, s6, s7')
    a('v_lshlrev_b32 v8, 15, v2')
    a('v_lshl_add_u32 v8, v3, 4, v8')
    a('v_add_u32 v8, s6, v8')
    a('v_lshrrev_b32 v10, 3, v0')
    a('v_lshlrev_b32 v10, 10, v10')
    a('v_and_b32 v11, 7, v0')
    a('v_lshl_add_u32 v10, v11, 4, v10')
    a('s_lshl_b32 s6, s4, 17')
    a('s_lshl_b32 s7, s5, 7')
    a('s_add_u32 s6, s6, s7')
    a('v_add_u32 v10, s6, v10')
    lds_wait(F_GO, 1, 11)
    for u in range(32):
        if u >= 8:
            a('s_waitcnt vmcnt(7)')
        if u < 16:
            a(f's_mov_b32 s56, {(32 * (u & 3) + (u >> 2)) * 8192:#x}')
            a(f'buffer_load_dwordx4 {vr(WV + 4 * u)}, v8, s[8:11], s56 offen {NT}')
        else:
            a(f's_mov_b32 s56, {(u - 16) * 8192:#x}')
            a(f'buffer_load_dwordx4 {vr(WO + 4 * (u - 16))}, v10, s[12:15], s56 offen {NT}')
    a('s_waitcnt vmcnt(0)')
    w_transpose(WO, L_SCR2, 11, 14, 15)
    flag_wait(2)
    stamp(2)
    a('v_and_b32 v11, 7, v0')
    a('v_lshrrev_b32 v12, 3, v0')
    a('v_lshl_add_u32 v12, v11, 3, v12')
    a('v_lshlrev_b32 v12, 3, v12')
    a(f'v_add_u32 v12, {O_MLA:#x}, v12')
    a(f's_mul_i32 s6, s4, {HS:#x}')
    a('s_lshl_b32 s7, s5, 13')
    a('s_add_u32 s6, s6, s7')
    a(f's_add_u32 s54, s6, {CTXP:#x}')
    a('s_add_u32 s55, s54, 0x1000')
    poll(['buffer_load_dwordx2 v[8:9], v12, s[44:47], 0 offen sc1'], [8, 9], 11, sleep=8)
    for i in range(8):
        a(f'buffer_load_dwordx4 {vr(G + 4 * i)}, v13, s[48:51], {"s54" if i < 4 else "s55"} offen offset:{(i % 4) * 1024} sc1')
    stamp(3)
    a('v_mov_b32 v10, v8')
    inrow('v_max_f32', 10, (1, 2, 4, 8))
    xrow('v_max_f32', 10, 11)
    a('v_sub_f32 v8, v8, v10')
    a('v_exp_f32 v8, v8')
    a('v_cvt_pk_bf16_f32 v8, v8, v8')
    a('v_and_b32 v10, 0xffff0000, v8')
    a('v_mul_f32 v9, v10, v9')
    inrow('v_add_f32', 9, (1, 2, 4, 8))
    xrow('v_add_f32', 9, 11)
    a('v_rcp_f32 v9, v9')
    for i in range(8):
        B = BT + 4 * (i & 1)
        a(f'v_mov_b32_dpp v10, v8 row_newbcast:{i} row_mask:0xf bank_mask:0x3')
        a(f'v_mov_b32_dpp v10, v8 row_newbcast:{8 + i} row_mask:0xf bank_mask:0xc')
        for k in range(4):
            a(f'v_and_b32 v{B + k}, v10, v{4 + k}')
        a(f's_waitcnt vmcnt({7 - i})')
        a(f'v_mfma_f32_16x16x32_bf16 {vr(ACC)}, {vr(G + 4 * i)}, {vr(B)}, {vr(ACC) if i else "0"}')
    a('v_lshl_add_u32 v10, v2, 7, v1')
    a('v_and_b32 v11, 7, v0')
    a('v_lshl_add_u32 v10, v11, 2, v10')
    a('v_lshrrev_b32 v11, 3, v3')
    a('v_lshrrev_b32 v12, 1, v2')
    a('v_cmp_eq_u32 vcc, v11, v12')
    a('s_mov_b64 exec, vcc')
    for i in range(4):
        a(f'ds_write_b32 v10, v{ACC + i} offset:{M_CT + 32 * i}')
    a('s_mov_b64 exec, -1')
    a('v_lshl_add_u32 v10, v0, 2, v1')
    a('s_waitcnt lgkmcnt(0)')
    a(f'ds_read_b32 v11, v10 offset:{M_CT}')
    a(f'ds_read_b32 v12, v10 offset:{M_CT + 256}')
    a('s_waitcnt lgkmcnt(0)')
    a('v_add_f32 v11, v11, v12')
    a('v_mul_f32 v11, v11, v9')
    a('v_cvt_pk_bf16_f32 v9, v11, v11')
    for u in range(16):
        B = BT + 4 * (u & 1)
        for i in range(4):
            a(f'v_and_b32_dpp v{B + i}, v9, v{4 + i} row_newbcast:{u} {DPPM}')
        a(f'v_mfma_f32_16x16x32_bf16 {vr(ACC)}, {vr(WV + 4 * u)}, {vr(B)}, {vr(ACC) if u else "0"}')
    a('s_lshl_b32 s6, s5, 8')
    a(f's_add_u32 s7, s6, {O_CP:#x}')
    a('v_lshl_add_u32 v12, v2, 3, v3')
    a('v_lshlrev_b32 v12, 3, v12')
    a('v_add_u32 v12, s7, v12')
    a(f'v_mov_b32 v11, {OOB:#x}')
    a('v_cmp_gt_u32 vcc, 8, v3')
    a('v_cndmask_b32 v12, v11, v12, vcc')
    a(f'v_cvt_pk_bf16_f32 v16, v{ACC}, v{ACC + 1}')
    a(f'v_cvt_pk_bf16_f32 v17, v{ACC + 2}, v{ACC + 3}')
    guard(16)
    guard(17)
    a('buffer_store_dwordx2 v[16:17], v12, s[44:47], 0 offen sc1')
    a('v_and_b32 v12, 7, v3')
    a('v_lshlrev_b32 v12, 8, v12')
    a('v_lshl_add_u32 v12, v2, 4, v12')
    a(f'v_add_u32 v12, {O_CP:#x}, v12')
    a(f's_add_u32 s7, s6, {O_YA:#x}')
    a('v_lshlrev_b32 v14, 2, v0')
    a('v_add_u32 v14, s7, v14')
    poll([f'buffer_load_dwordx4 {vr(G + 4 * ks)}, v12, s[44:47], 0 offen offset:{ks * 64} sc1' for ks in range(4)],
         range(G, G + 16), 11, sleep=4)
    DD = 32
    for ks in range(4):
        for nt in range(4):
            D = DD + 4 * nt
            a(f'v_mfma_f32_16x16x32_bf16 {vr(D)}, {vr(G + 4 * ks)}, {vr(WO + 16 * ks + 4 * nt)}, {vr(D) if ks else "0"}')
    for nt in range(4):
        D = DD + 4 * nt
        a(f'v_add_f32 v{D}, v{D}, v{D + 1}')
        a(f'v_add_f32 v{D + 2}, v{D + 2}, v{D + 3}')
        a(f'v_add_f32 v{D}, v{D}, v{D + 2}')
    rows_transpose_sum(DD, DD + 4, DD + 8, DD + 12)
    a(f'v_mul_f32 v{DD}, 0.5, v{DD}')
    guard(DD)
    a(f'buffer_store_dword v{DD}, v14, s[44:47], 0 offen sc1')
    stamp(4)
    a('s_cmp_eq_u32 s53, 2')
    a('s_cbranch_scc0 L_FIN2')
    root_all()
    fr = final_reduce(O_YA, 0, 24, 20)
    fr()
    stamp(5)
    a('L_FIN2:')
    endwave()

    a('L_BW:')
    QB, KB, VB, S, ACC, PB = 16, 32, 48, 64, 68, 72
    vM, vL = 88, 89
    a('s_sub_u32 s3, s3, 3')
    a('v_lshrrev_b32 v12, 2, v3')
    a('v_lshlrev_b32 v12, 8, v12')
    a('v_lshl_add_u32 v12, v2, 6, v12')
    a('v_and_b32 v13, 3, v0')
    a('v_lshl_add_u32 v12, v13, 4, v12')
    a('v_lshlrev_b32 v13, 4, v0')
    a('s_lshl_b32 s58, s5, 2')
    a('s_add_u32 s58, s58, s3')
    a(f's_mul_i32 s59, s4, {rot}')
    a('s_add_u32 s6, s58, s59')
    a('s_and_b32 s6, s6, 511')
    a('s_lshl_b32 s55, s6, 12')
    a('s_lshl_b32 s7, s4, 21')
    a('s_mov_b32 s10, 0x200000')
    a('s_mov_b32 s11, 0x20000')
    a('s_mov_b32 s14, 0x200000')
    a('s_mov_b32 s15, 0x20000')
    a('s_waitcnt lgkmcnt(0)')
    a('s_add_u32 s8, s30, s7')
    a('s_addc_u32 s9, s31, 0')
    a('s_add_u32 s12, s32, s7')
    a('s_addc_u32 s13, s33, 0')
    a('s_barrier')
    a('s_and_b32 s6, s53, 3')
    a('s_cbranch_scc0 L_ATT')

    def issueK(so):
        for t in range(4):
            a(f'buffer_load_dwordx4 {vr(KB + 4 * t)}, v12, s[8:11], {so} offen offset:{t * 1024} {NT}')

    def issueV(so):
        for t in range(4):
            a(f'buffer_load_dwordx4 {vr(VB + 4 * t)}, v13, s[12:15], {so} offen offset:{t * 1024} {NT}')

    issueK('s55')
    issueV('s55')
    ws_srds()
    a('L_BSTART:')
    masks(10, 11)
    a('s_lshl_b32 s58, s5, 2')
    a('s_add_u32 s58, s58, s3')
    a(f's_mul_i32 s59, s4, {rot}')
    a('s_lshl_b32 s6, s58, 8')
    a(f's_add_u32 s6, s6, {O_OP:#x}')
    a('v_lshl_add_u32 v14, v2, 3, v3')
    a('v_lshlrev_b32 v14, 3, v14')
    a('v_add_u32 v14, s6, v14')
    a(f'v_mov_b32 v11, {OOB:#x}')
    a('v_cmp_gt_u32 vcc, 8, v3')
    a('v_cndmask_b32 v14, v11, v14, vcc')
    a('s_lshl_b32 s6, s58, 3')
    a(f's_add_u32 s6, s6, {O_MLB:#x}')
    a('v_mov_b32 v15, s6')
    a('v_cmp_eq_u32 vcc, 0, v0')
    a('v_cndmask_b32 v15, v11, v15, vcc')
    a(f'v_mov_b32 v{vM}, 0xff7fffff')
    a(f'v_mov_b32 v{vL}, 0')
    for i in range(4):
        a(f'v_mov_b32 v{ACC + i}, 0')
    a(f's_mov_b32 s60, {CSC:#x}')
    lds_wait(F_Q, 1, 11)
    build_qb(QB, M_QB, 11, 92)
    stamp(3)
    a('L_BLOOP:')
    a('s_mov_b32 s57, 1')
    a(f's_atomic_add s57, s[44:45], {O_TICK:#x} glc')
    a('s_waitcnt vmcnt(4)')
    for t in range(4):
        a(f'v_mfma_f32_16x16x32_bf16 {vr(S)}, {vr(KB + 4 * t)}, {vr(QB + 4 * t)}, {vr(S) if t else "0"}')
    a('s_waitcnt lgkmcnt(0)')
    a('s_add_u32 s57, s57, 33')
    a('s_add_u32 s6, s57, s59')
    a('s_and_b32 s6, s6, 511')
    a('s_lshl_b32 s6, s6, 12')
    a('s_cmp_lt_u32 s57, 512')
    a('s_cselect_b32 s55, s6, 0x200000')
    issueK('s55')
    quad_sum(90, S)
    a('v_mul_f32 v90, s60, v90')
    a(f'v_max_f32 v91, v90, v{vM}')
    inrow('v_max_f32', 91, (4, 8))
    xrow('v_max_f32', 91, 92)
    a(f'v_sub_f32 v92, v{vM}, v91')
    a('v_sub_f32 v90, v90, v91')
    a('v_exp_f32 v92, v92')
    a('v_exp_f32 v90, v90')
    a(f'v_mov_b32 v{vM}, v91')
    a(f'v_fma_f32 v{vL}, v{vL}, v92, v90')
    a('v_cvt_pk_bf16_f32 v90, v90, v90')
    for i in range(4):
        a(f'v_mul_f32 v{ACC + i}, v{ACC + i}, v92')
    for u in range(4):
        for i in range(4):
            a(f'v_and_b32_dpp v{PB + 4 * u + i}, v90, v{4 + i} row_newbcast:{4 * u} {DPPM}')
    a('s_cmp_lt_u32 s57, 512')
    a('s_cbranch_scc1 L_BPV')
    inrow('v_add_f32', vL, (4, 8))
    xrow('v_add_f32', vL, 92)
    guard(vM)
    guard(vL)
    a(f'buffer_store_dwordx2 v[{vM}:{vL}], v15, s[44:47], 0 offen sc1')
    a('L_BPV:')
    a('s_waitcnt vmcnt(4)')
    for u in range(4):
        a(f'v_mfma_f32_16x16x32_bf16 {vr(ACC)}, {vr(VB + 4 * u)}, {vr(PB + 4 * u)}, {vr(ACC)}')
        a(f'buffer_load_dwordx4 {vr(VB + 4 * u)}, v13, s[12:15], s55 offen offset:{u * 1024} {NT}')
    a('s_cmp_lt_u32 s57, 512')
    a('s_cbranch_scc1 L_BLOOP')
    a(f'v_cvt_pk_bf16_f32 v90, v{ACC}, v{ACC + 1}')
    a(f'v_cvt_pk_bf16_f32 v91, v{ACC + 2}, v{ACC + 3}')
    guard(90)
    guard(91)
    a('buffer_store_dwordx2 v[90:91], v14, s[44:47], 0 offen sc1')
    lds_inc(F_BDONE, 92)
    stamp(5)
    endwave()

    a('L_ATT:')
    CF, QG, QR, SD = 128, 96, 64, 16
    srd(60, 18, 0x800000)
    a('s_lshr_b32 s6, s53, 2')
    a('s_lshl_b32 s54, s4, 1')
    a('s_add_u32 s54, s54, s6')
    a('s_lshl_b32 s56, s3, 15')
    a('s_lshl_b32 s57, s54, 17')
    a('s_add_u32 s57, s57, s56')
    for f in range(16):
        a(f'v_xor_b32 v{64 + f}, {f * 16}, v13')
    for i in range(32):
        if i % 4 == 0:
            a('s_mov_b32 m0, s56')
        if i >= 8:
            a('s_waitcnt vmcnt(7)')
        f = ((i & 3) << 2) | ((i >> 2) & 3)
        a(f'buffer_load_dwordx4 v{64 + f}, s[60:63], s57 offen offset:{(i % 4) * 1024} {NT} lds')
        if i % 4 == 3 and i < 31:
            a('s_add_u32 s56, s56, 0x1000')
            a('s_add_u32 s57, s57, 0x1000')
        if i == 7:
            ws_srds()
    a('v_and_b32 v40, 3, v0')
    a('v_lshlrev_b32 v40, 2, v40')
    a('v_bfe_u32 v41, v0, 2, 2')
    a('v_or_b32 v40, v40, v41')
    a('v_lshrrev_b32 v41, 5, v0')
    a('v_xor_b32 v40, v40, v41')
    a('v_and_b32 v42, 31, v0')
    a('s_lshl_b32 s56, s3, 15')
    a('v_lshlrev_b32 v43, 10, v42')
    a('v_add_u32 v43, s56, v43')
    a('v_lshlrev_b32 v44, 9, v42')
    a(f'v_add_u32 v44, {L_STG:#x}, v44')
    for k in range(8):
        a(f'v_xor_b32 v45, {2 * k}, v40')
        a(f'v_lshl_add_u32 v{32 + k}, v45, 4, v43')
        a(f'v_lshl_add_u32 v{4 + k}, v45, 4, v44')
    a('s_lshl_b32 s6, s3, 3')
    a('v_add_u32 v45, s6, v41')
    a(f'v_mul_u32_u24 v14, {HB:#x}, v45')
    a('v_lshl_add_u32 v14, v42, 4, v14')
    a(f'v_add_u32 v14, {O_QABS:#x}, v14')
    for i in range(4):
        a(f'v_add_u32 v46, {2 * i}, v45')
        a('v_and_b32 v47, 3, v46')
        a('v_lshlrev_b32 v47, 2, v47')
        a('v_bfe_u32 v15, v46, 2, 2')
        a('v_or_b32 v47, v47, v15')
        a('v_xor_b32 v47, v47, v42')
        a('v_lshlrev_b32 v46, 9, v46')
        a(f'v_lshl_add_u32 v{28 + i}, v47, 4, v46')
        a(f'v_add_u32 v{28 + i}, {L_STG:#x}, v{28 + i}')
    root_all()
    a('s_waitcnt vmcnt(0)')
    stamp(1)
    for ks in range(32):
        a(f'ds_read_b128 {vr(CF + 4 * ks)}, v{32 + (ks & 7)} offset:{256 * (ks >> 3)}')
        if ks % 8 == 7:
            a('s_waitcnt lgkmcnt(0)')
    for i in range(4):
        a(f's_mov_b32 s{56 + i}, {2 * i * HB:#x}')
    lo = []
    for rq in range(2):
        for i in range(4):
            lo.append(f'buffer_load_dwordx4 {vr(QG + 16 * rq + 4 * i)}, v14, s[48:51], s{56 + i} offen offset:{rq * 512} sc1')
    poll(lo, range(QG, QG + 32), 15, sleep=4)
    stamp(2)
    for i in range(4):
        a(f'ds_write_b128 v{28 + i}, {vr(QG + 4 * i)}')
    issueK('s55')
    issueV('s55')
    lds_inc(F_GO, 15)
    nsync = [0]

    def sync():
        nsync[0] += 1
        a('s_waitcnt lgkmcnt(0)')
        lds_inc(F_SYNC, 15)
        lds_wait(F_SYNC, 4 * nsync[0], 15, sleep=0)

    for rq in range(2):
        if rq == 1:
            sync()
            for i in range(4):
                a(f'ds_write_b128 v{QG + i}, {vr(QG + 16 + 4 * i)}')
        sync()
        if rq == 0:
            for i in range(4):
                a(f'v_mov_b32 v{QG + i}, v{28 + i}')
        for k in range(7):
            a(f'ds_read_b128 {vr(QR + 4 * k)}, v{4 + k}')
        for k in range(16):
            if k + 7 < 16:
                kk = k + 7
                a(f'ds_read_b128 {vr(QR + 4 * (kk & 7))}, v{4 + (kk & 7)} offset:{256 * (kk >> 3)}')
            a(f's_waitcnt lgkmcnt({min(7, 15 - k)})')
            first = rq == 0 and k == 0
            a(f'v_mfma_f32_32x32x16_bf16 {vr(SD, 16)}, {vr(CF + 4 * (16 * rq + k))}, {vr(QR + 4 * (k & 7))}, {"0" if first else vr(SD, 16)}')
    TA = 96
    a('v_bfe_u32 v4, v0, 2, 2')
    a('v_lshrrev_b32 v5, 5, v0')
    a('v_lshl_add_u32 v6, v5, 2, v4')
    a('v_lshlrev_b32 v6, 10, v6')
    a('s_lshl_b32 s6, s3, 8')
    a('v_add_u32 v6, s6, v6')
    a('v_and_b32 v7, 1, v0')
    a('v_lshl_add_u32 v6, v7, 3, v6')
    a('v_lshl_or_b32 v4, v4, 2, v5')
    a('v_and_b32 v7, 1, v2')
    a('v_bfe_u32 v8, v0, 1, 1')
    a('v_lshl_or_b32 v7, v7, 1, v8')
    a('v_xor_b32 v4, v4, v7')
    for t in range(4):
        for sec in range(2):
            r = TA + 2 * t + sec
            a(f'v_xor_b32 v7, {(4 * t) ^ (2 * sec)}, v4')
            a(f'v_lshl_add_u32 v{r}, v7, 4, v6')
            if sec:
                a(f'v_add_u32 v{r}, 0x2000, v{r}')
            a(f'v_add_u32 v{r + 8}, 0x10000, v{r}')
    a(f's_mov_b32 s60, {CSC:#x}')
    a('v_and_b32 v7, 31, v0')
    a('v_lshl_add_u32 v7, v7, 2, v1')
    a('s_lshl_b32 s6, s3, 7')
    a('v_add_u32 v8, s6, v7')
    a(f'v_max3_f32 v9, v{SD}, v{SD + 1}, v{SD + 2}')
    for i in range(3, 15, 2):
        a(f'v_max3_f32 v9, v{SD + i}, v{SD + i + 1}, v9')
    a(f'v_max_f32 v9, v{SD + 15}, v9')
    a('v_mov_b32 v10, v9')
    a('v_permlane32_swap_b32 v9, v10')
    a('v_max_f32 v9, v9, v10')
    a(f'ds_write_b32 v8, v9 offset:{M_MX}')
    sync()
    for i in range(4):
        a(f'ds_read_b32 v{64 + i}, v7 offset:{M_MX + 128 * i}')
    a('s_waitcnt lgkmcnt(0)')
    a('v_max3_f32 v9, v64, v65, v66')
    a('v_max_f32 v9, v67, v9')
    a('v_mul_f32 v10, s60, v9')
    for i in range(16):
        a(f'v_fma_f32 v{SD + i}, v{SD + i}, s60, -v10')
    for i in range(16):
        a(f'v_exp_f32 v{SD + i}, v{SD + i}')
    for i in range(8):
        a(f'v_cvt_pk_bf16_f32 v{64 + i}, v{SD + 2 * i}, v{SD + 2 * i + 1}')
    a('s_lshl_b32 s6, s3, 11')
    a(f's_add_u32 s6, s6, {L_STG:#x}')
    a('v_add_u32 v11, s6, v13')
    a('ds_write_b128 v11, v[64:67]')
    a('ds_write_b128 v11, v[68:71] offset:1024')
    for st in (8, 4, 2, 1):
        for i in range(st):
            a(f'v_add_f32 v{SD + i}, v{SD + i}, v{SD + st + i}')
    a(f'v_mov_b32 v9, v{SD}')
    a(f'v_permlane32_swap_b32 v{SD}, v9')
    a(f'v_add_f32 v9, v{SD}, v9')
    a(f'ds_write_b32 v8, v9 offset:{M_LS}')
    sync()
    PA, PF, TR = 128, 192, 224
    a(f'v_add_u32 v11, {L_STG:#x}, v13')
    for st in range(8):
        a(f'ds_read_b128 {vr(PF + 4 * st)}, v11 offset:{st * 1024}')
    a('s_waitcnt lgkmcnt(0)')

    def trd(n):
        st, t = n >> 2, n & 3
        for sec in range(2):
            a(f'ds_read_b64_tr_b16 {vr(TR + 4 * (n & 7) + 2 * sec, 2)}, v{TA + 2 * t + sec + 8 * (st >> 2)} offset:{(st & 3) * 16384}')

    for n in range(6):
        trd(n)
    for n in range(32):
        if n + 6 < 32:
            trd(n + 6)
        a(f's_waitcnt lgkmcnt({2 * min(6, 31 - n)})')
        st, t = n >> 2, n & 3
        a(f'v_mfma_f32_32x32x16_bf16 {vr(PA + 16 * t, 16)}, {vr(PF + 4 * st)}, {vr(TR + 4 * (n & 7))}, {vr(PA + 16 * t, 16) if st else "0"}')
    a(f'v_mul_u32_u24 v9, {4 * HS:#x}, v5')
    a('v_and_b32 v11, 1, v2')
    a('v_lshl_add_u32 v9, v11, 13, v9')
    a('v_lshl_add_u32 v9, v3, 3, v9')
    a('s_lshl_b32 s6, s3, 14')
    a('s_lshl_b32 s7, s54, 7')
    a('s_add_u32 s6, s6, s7')
    a(f's_add_u32 s6, s6, {CTXP:#x}')
    a('v_add_u32 v9, s6, v9')
    for rg in range(16):
        a(f'v_cvt_pk_bf16_f32 v{64 + 2 * rg}, v{PA + rg}, v{PA + 16 + rg}')
        a(f'v_cvt_pk_bf16_f32 v{65 + 2 * rg}, v{PA + 32 + rg}, v{PA + 48 + rg}')
        a(f's_mov_b32 s56, {(8 * (rg >> 2) + (rg & 3)) * HS:#x}')
        a(f'buffer_store_dwordx2 {vr(64 + 2 * rg, 2)}, v9, s[48:51], s56 offen sc1')
    for i in range(4):
        a(f'ds_read_b32 v{16 + i}, v7 offset:{M_LS + 128 * i}')
    a('v_and_b32 v9, 31, v0')
    a(f'v_mul_u32_u24 v9, {HB:#x}, v9')
    a('s_lshl_b32 s6, s54, 3')
    a(f's_add_u32 s6, s6, {O_MLA:#x}')
    a('v_add_u32 v9, s6, v9')
    a('s_waitcnt lgkmcnt(0)')
    a('v_add_f32 v16, v16, v17')
    a('v_add_f32 v18, v18, v19')
    a('v_add_f32 v11, v16, v18')
    guard(10)
    guard(11)
    a('v_mov_b32 v15, 1')
    a('s_waitcnt vmcnt(0)')
    a('s_mov_b64 exec, 1')
    a(f'ds_add_rtn_u32 v15, v1, v15 offset:{F_LAST}')
    a('s_mov_b64 exec, -1')
    a('s_waitcnt lgkmcnt(0)')
    a('v_readfirstlane_b32 s6, v15')
    a('s_cmp_eq_u32 s6, 3')
    a('s_cbranch_scc0 L_ATT_done')
    a('s_mov_b32 exec_hi, 0')
    a('buffer_store_dwordx2 v[10:11], v9, s[48:51], 0 offen sc1')
    a('s_mov_b64 exec, -1')
    a('L_ATT_done:')
    stamp(4)
    a('s_branch L_BSTART')

    if stamps:
        a('L_STAMPOUT:')
        a('s_waitcnt lgkmcnt(0)')
        a('s_lshl_b32 s6, s2, 3')
        a('s_add_u32 s6, s6, s101')
        a('s_lshl_b32 s6, s6, 6')
        a(f's_add_u32 s6, s6, {STAMP_OFF}')
        a('v_mov_b32 v20, s6')
        for k in range(12):
            a(f'v_mov_b32 v{24 + k}, s{88 + k}')
        a('s_mov_b64 exec, 1')
        for k in range(3):
            a(f'global_store_dwordx4 v20, v[{24 + 4 * k}:{27 + 4 * k}], s[42:43] offset:{16 * k}')
    a('L_END:')
    a('s_endpgm')
    if stamps:
        i = o.index('s_lshr_b32 s4, s2, 3')
        o.insert(i + 1, 's_mov_b32 s101, s3')
    body = fix_hazards(o)
    tail = f'''.section .rodata,"a"
.p2align 6
.amdhsa_kernel {NAME}_kernel
  .amdhsa_next_free_vgpr 256
  .amdhsa_next_free_sgpr 102
  .amdhsa_accum_offset 256
  .amdhsa_group_segment_fixed_size 0
  .amdhsa_kernarg_size 112
  .amdhsa_user_sgpr_count 2
  .amdhsa_user_sgpr_kernarg_segment_ptr 1
  .amdhsa_system_sgpr_workgroup_id_x 1
  .amdhsa_float_denorm_mode_32 3
.end_amdhsa_kernel
'''
    txt = []
    for l in body:
        if l.startswith(';') or l.startswith('.') or l.endswith(':'):
            txt.append(l)
        else:
            txt.append('    ' + l)
    return '\n'.join(txt) + '\n' + tail


if __name__ == '__main__':
    open('k.s', 'w').write(gen())
    open('k_st.s', 'w').write(gen(stamps=True))
    print('ok')
```
